```python
import torch

def _softmax(x, axis=-1):
    return torch.softmax(x, dim=axis)
def _gelu(x):
    return torch.nn.functional.gelu(x, approximate="tanh")
def _silu(x):
    return torch.nn.functional.silu(x)
def _sigmoid(x):
    return torch.sigmoid(x)
def _layernorm(x, axis=-1, eps=1e-5):
    m = x.mean(dim=axis, keepdim=True)
    v = x.var(dim=axis, keepdim=True, unbiased=False)
    return (x - m) / torch.sqrt(v + eps)
def _scatter_add(tgt, idx, src, axis=0):
    return tgt.clone().index_add_(axis, idx, src)
def _segment_sum(src, seg, n):
    out = torch.zeros((n,) + src.shape[1:], dtype=src.dtype)
    return out.index_add_(0, seg, src)
def _pad(x, pw):
    flat = tuple(v for pair in reversed(pw) for v in pair)
    return torch.nn.functional.pad(x, flat)

kernel_name = 'standalone__rmsnorm__sampling'

def setup_inputs():

    _w = (lambda a: (lambda t: t.to(torch.bfloat16) if t.is_floating_point() else t)(torch.as_tensor(a)))
    B, S, D = 1024, 32, 512
    return {
        "x": _w((lambda *s: torch.randn(*s, dtype=torch.bfloat16) * 0.05)(B, S, D)),
        "g": _w((lambda *s: torch.randn(*s, dtype=torch.bfloat16) * 0.05)(D) + 1.0),
    }

def reference(x, g):
    rms = torch.sqrt((x * x).mean(axis=-1, keepdims=True) + 1e-6)
    return x / rms * g
```

```python
import argparse

HDR = """; Kernarg layout for this problem (40 bytes, ptrs only, base s[0:1]):
"""
NAME = "standalone__rmsnorm__sampling_kernel"
ROWS = 32768
XB = ROWS * 1024

def lg(n):
    assert n & (n - 1) == 0
    return n.bit_length() - 1

class Emit:
    def __init__(self):
        self.o = []
    def __call__(self, s):
        self.o.append(s if s.endswith(":") or s.startswith((".", ";")) else "    " + s)
    def text(self):
        return "\n".join(self.o) + "\n"

def reduce_rows(e, R, S, fill):
    def pad(n):
        k = 0
        while k < n and fill:
            e(fill.pop(0)); k += 1
        if k < n:
            e(f"s_nop {n-k-1}")
    if R == 4:
        pad(3)
        e(f"v_permlane32_swap_b32 v{S}, v{S+1}")
        e(f"v_permlane32_swap_b32 v{S+2}, v{S+3}")
        e(f"v_add_f32 v{S}, v{S}, v{S+1}")
        e(f"v_add_f32 v{S+2}, v{S+2}, v{S+3}")
        pad(2)
        e(f"v_permlane16_swap_b32 v{S}, v{S+2}")
        e(f"v_add_f32 v{S}, v{S}, v{S+2}")
        lanes = [0, 32, 16, 48]
    elif R == 2:
        pad(3)
        e(f"v_permlane32_swap_b32 v{S}, v{S+1}")
        e(f"v_add_f32 v{S}, v{S}, v{S+1}")
        e(f"v_mov_b32 v{S+1}, v{S}")
        pad(2)
        e(f"v_permlane16_swap_b32 v{S}, v{S+1}")
        e(f"v_add_f32 v{S}, v{S}, v{S+1}")
        lanes = [0, 32]
    elif R == 1:
        pad(3)
        e(f"v_mov_b32 v{S+1}, v{S}")
        pad(2)
        e(f"v_permlane32_swap_b32 v{S}, v{S+1}")
        e(f"v_add_f32 v{S}, v{S}, v{S+1}")
        e(f"v_mov_b32 v{S+1}, v{S}")
        pad(2)
        e(f"v_permlane16_swap_b32 v{S}, v{S+1}")
        e(f"v_add_f32 v{S}, v{S}, v{S+1}")
        lanes = None
    for k in (8, 4, 2, 1):
        pad(2)
        e(f"v_add_f32_dpp v{S}, v{S}, v{S} row_ror:{k} row_mask:0xf bank_mask:0xf")
    e(f"v_mul_f32 v{S}, 0x3b000000, v{S}")
    e(f"v_cvt_pk_bf16_f32 v{S}, 0, v{S}")
    e(f"v_add_f32 v{S}, 0x358637bd, v{S}             ; + 1e-6")
    e(f"v_cvt_pk_bf16_f32 v{S}, 0, v{S}")
    e(f"v_sqrt_f32 v{S}, v{S}")
    pad(1)
    e(f"v_cvt_pk_bf16_f32 v{S}, 0, v{S}")
    e(f"v_rcp_f32 v{S}, v{S}")
    pad(1)
    return lanes, pad

def gen(R=2, NIT=8, W=4, NBUF=2, ldf="nt", stf="sc0 sc1", mapm="plain", mimic=False, diag=False, early=True, vmin=0):
    assert NIT % NBUF == 0
    NW = ROWS // (R * NIT)
    nwg = NW // W
    UB = R * 1024
    stride = NW * UB
    e = Emit()
    e.o.append(HDR + f"; @launch grid=({nwg},1,1) block=({64*W},1,1) lds=0")
    e('.amdgcn_target "amdgcn-amd-amdhsa--gfx950"')
    e(".text")
    e(f".globl {NAME}")
    e(".p2align 8")
    e(f".type {NAME},@function")
    e(f"{NAME}:")
    if diag:
        e("s_memrealtime s[40:41]")
        e("s_load_dwordx2 s[56:57], s[0:1], 32")
    e("s_load_dwordx4 s[4:7], s[0:1], 0            ; x, g")
    e("s_load_dwordx2 s[12:13], s[0:1], 16         ; out")
    e(f"s_cmp_ge_u32 s2, {nwg}")
    e("s_cbranch_scc1 L_end")
    if W > 1:
        e("v_lshrrev_b32 v1, 6, v0")
        e("v_lshlrev_b32 v0, 4, v0")
        e("v_readfirstlane_b32 s3, v1")
        e("v_and_b32 v0, 0x3f0, v0                     ; lane*16")
    else:
        e("s_mov_b32 s3, 0")
        e("v_lshlrev_b32 v0, 4, v0")
    if diag:
        e(f"s_lshl_b32 s58, s2, {lg(W)}")
        e("s_add_u32 s58, s58, s3")
    if mapm == "plain":
        e(f"s_lshl_b32 s20, s2, {lg(W)}")
        e("s_add_u32 s20, s20, s3")
        e(f"s_lshl_b32 s20, s20, {lg(UB)}")
    else:
        ph = int(mapm[-1])
        LOWN = 8192 // UB
        e("s_lshr_b32 s20, s2, 3")
        e("s_lshl_b32 s20, s20, 2")
        e("s_and_b32 s22, s2, 3")
        e("s_or_b32 s20, s20, s22")
        e(f"s_lshl_b32 s20, s20, {lg(W)}")
        e("s_add_u32 s20, s20, s3")
        e(f"s_and_b32 s22, s20, {LOWN-1}")
        e(f"s_lshl_b32 s22, s22, {lg(UB)}")
        e(f"s_lshr_b32 s20, s20, {lg(LOWN)}")
        e("s_lshl_b32 s20, s20, 14")
        e("s_or_b32 s20, s20, s22")
        e("s_lshr_b32 s22, s20, 8")
        e("s_lshl_b32 s23, s2, 11")
        e("s_xor_b32 s22, s22, s23")
        if ph:
            e("s_not_b32 s22, s22")
        e("s_and_b32 s22, s22, 0x2000")
        e("s_or_b32 s20, s20, s22")
    flip = (mapm != "plain") and stride == (2 << 20)
    assert mapm == "plain" or stride >= (2 << 20)
    e("v_add_u32 v2, s20, v0")
    e("v_add_u32 v3, s20, v0")
    e("s_mov_b32 s10, 0x2000000")
    e("s_mov_b32 s11, 0x20000")
    e("s_mov_b32 s14, 0x2000000")
    e("s_mov_b32 s15, 0x20000")
    e("s_mov_b32 s24, 0xffff0000")
    e(f"s_mov_b32 s25, {NIT//NBUF}")
    X = 4
    G = X + 4 * R * NBUF
    T = G + 8
    nT = 8 * R if early else 8
    O = T + nT
    nO = 4 * R if early else 0
    S = O + nO
    top = S + max(R, 2)
    GR = T
    e("s_waitcnt lgkmcnt(0)")
    if diag:
        e("s_memrealtime s[42:43]")
    e("s_mov_b32 s8, s4")
    e("s_mov_b32 s9, s5")
    def adv(sr):
        vr = {20: 2, 21: 3}[sr]
        e(f"v_add_u32 v{vr}, {stride}, v{vr}")
        if flip:
            e(f"v_xor_b32 v{vr}, 0x2000, v{vr}")
    def loads(b):
        for r in range(R):
            x = X + 4 * (b * R + r)
            e(f"buffer_load_dwordx4 v[{x}:{x+3}], v2, s[8:11], 0 offen offset:{r*1024} {ldf}".rstrip())
        adv(20)
    loads(0)
    e(f"global_load_dwordx4 v[{GR}:{GR+3}], v0, s[6:7]")
    for b in range(1, NBUF):
        loads(b)
    e(f"s_waitcnt vmcnt({(NBUF-1)*R})")
    if diag:
        e("s_memrealtime s[44:45]")
    for i in range(4):
        e(f"v_lshlrev_b32 v{G+2*i}, 16, v{GR+i}")
        e(f"v_and_b32 v{G+2*i+1}, s24, v{GR+i}")
    e("s_branch L_body")
    e(".p2align 6")
    e("L_loop:")
    for b in range(NBUF):
        if early:
            n_after = R + (NBUF - 1) * 2 * R
        else:
            n_after = (NBUF - 1) * 2 * R
        e(f"s_waitcnt vmcnt({n_after})") if b == 0 else None
        if b == 0:
            e("L_body:")
        else:
            first = (NBUF - 1 - b) * R + b * 2 * R
            if first < n_after:
                e(f"s_cmp_lg_u32 s25, {NIT//NBUF}")
                e(f"s_cbranch_scc1 L_w{b}")
                e(f"s_waitcnt vmcnt({first})")
                e(f"L_w{b}:")
            e(f"s_waitcnt vmcnt({n_after})")
        xs = [X + 4 * (b * R + r) for r in range(R)]
        for i in range(4):
            for r in range(R):
                src = "0" if i == 0 else f"v{S+r}"
                e(f"v_dot2_f32_bf16 v{S+r}, v{xs[r]+i}, v{xs[r]+i}, {src}")
        if early:
            fill = []
            for r in range(R):
                for i in range(4):
                    fill.append(f"v_lshlrev_b32 v{T+8*r+2*i}, 16, v{xs[r]+i}")
                    fill.append(f"v_and_b32 v{T+8*r+2*i+1}, s24, v{xs[r]+i}")
            unp = fill
            for s in unp:
                e(s)
            loads(b)
            fill = []
            if not mimic:
                for r in range(R):
                    for i in range(4):
                        t = T + 8 * r + 2 * i
                        fill.append(f"v_pk_mul_f32 v[{t}:{t+1}], v[{t}:{t+1}], v[{G+2*i}:{G+2*i+1}]")
            lanes, pad = reduce_rows(e, R, S, fill)
            if lanes:
                for r in range(R):
                    e(f"v_readlane_b32 s{16+r}, v{S}, {lanes[r]}")
                pad(2)
            for s in fill:
                e(s)
            for r in range(R):
                if lanes:
                    sp = 16 + (r & 2)
                    sc = f"s[{sp}:{sp+1}]"
                    sel = "op_sel_hi:[1,0]" if r % 2 == 0 else "op_sel:[0,1] op_sel_hi:[1,1]"
                else:
                    sc, sel = f"v[{S}:{S+1}]", "op_sel_hi:[1,0]"
                for i in range(4):
                    t = T + 8 * r + 2 * i
                    e(f"v_pk_mul_f32 v[{t}:{t+1}], v[{t}:{t+1}], {sc} {sel}")
                if mimic:
                    for i in range(8):
                        e(f"v_cvt_pk_bf16_f32 v{T+8*r+i}, 0, v{T+8*r+i}")
                    for i in range(4):
                        t = T + 8 * r + 2 * i
                        e(f"v_pk_mul_f32 v[{t}:{t+1}], v[{t}:{t+1}], v[{G+2*i}:{G+2*i+1}]")
                for i in range(4):
                    t = T + 8 * r + 2 * i
                    e(f"v_cvt_pk_bf16_f32 v{O+4*r+i}, v{t}, v{t+1}")
                e(f"buffer_store_dwordx4 v[{O+4*r}:{O+4*r+3}], v3, s[12:15], 0 offen offset:{r*1024} {stf}".rstrip())
            adv(21)
        else:
            raise NotImplementedError
    e("s_sub_u32 s25, s25, 1")
    e("s_cmp_lg_u32 s25, 0")
    e("s_cbranch_scc1 L_loop")
    if diag:
        e("s_memrealtime s[46:47]")
        e("s_waitcnt vmcnt(0)")
        e("s_memrealtime s[48:49]")
        e("s_getreg_b32 s50, hwreg(HW_REG_HW_ID)")
        e("s_getreg_b32 s51, hwreg(HW_REG_XCC_ID)")
        e("s_lshl_b32 s58, s58, 5")
        e("v_mov_b32 v1, s58")
        e("s_waitcnt lgkmcnt(0)")
        for i, sr in enumerate((40, 42, 44, 44, 46, 48, 50, 51)):
            e(f"v_mov_b32 v{4+i}, s{sr}")
        e("s_mov_b64 exec, 1")
        e("global_store_dwordx4 v1, v[4:7], s[56:57]")
        e("global_store_dwordx4 v1, v[8:11], s[56:57] offset:16")
    e("L_end:")
    e("s_endpgm")
    nv = max(top, vmin, 12)
    e('.section .rodata,"a"')
    e(".p2align 6")
    e(f".amdhsa_kernel {NAME}")
    e(f"  .amdhsa_next_free_vgpr {nv}")
    e(f"  .amdhsa_next_free_sgpr {64 if diag else 32}")
    e(f"  .amdhsa_accum_offset {(nv+3)//4*4}")
    e("  .amdhsa_group_segment_fixed_size 0")
    e("  .amdhsa_kernarg_size 40")
    e("  .amdhsa_user_sgpr_count 2")
    e("  .amdhsa_user_sgpr_kernarg_segment_ptr 1")
    e("  .amdhsa_system_sgpr_workgroup_id_x 1")
    e("  .amdhsa_float_denorm_mode_32 3")
    e(".end_amdhsa_kernel")
    return e.text()

def WAITB(b, R, NBUF, early):
    first = (NBUF - 1 - b) * R + b * 2 * R
    steady = R + (NBUF - 1) * 2 * R
    return min(first, steady)

if __name__ == "__main__":
    ap = argparse.ArgumentParser()
    ap.add_argument("out")
    ap.add_argument("-R", type=int, default=2)
    ap.add_argument("-N", type=int, default=8)
    ap.add_argument("-W", type=int, default=4)
    ap.add_argument("-B", type=int, default=2)
    ap.add_argument("--ldf", default="nt")
    ap.add_argument("--stf", default="sc0 sc1")
    ap.add_argument("--map", default="plain")
    ap.add_argument("--mimic", action="store_true")
    ap.add_argument("--diag", action="store_true")
    ap.add_argument("--vmin", type=int, default=0)
    a = ap.parse_args()
    open(a.out, "w").write(gen(a.R, a.N, a.W, a.B, a.ldf, a.stf, a.map, a.mimic, a.diag, True, a.vmin))
```

```python
import argparse

HDR = """; Kernarg layout for this problem (40 bytes, ptrs only, base s[0:1]):
"""
NAME = "standalone__rmsnorm__sampling_kernel"
ROWS = 32768
XB = ROWS * 1024

def lg(n):
    assert n & (n - 1) == 0
    return n.bit_length() - 1

class Emit:
    def __init__(self):
        self.o = []
    def __call__(self, s):
        self.o.append(s if s.endswith(":") or s.startswith((".", ";")) else "    " + s)
    def text(self):
        return "\n".join(self.o) + "\n"

def reduce_rows(e, R, S, fill):
    def pad(n):
        k = 0
        while k < n and fill:
            e(fill.pop(0)); k += 1
        if k < n:
            e(f"s_nop {n-k-1}")
    if R == 4:
        pad(3)
        e(f"v_permlane32_swap_b32 v{S}, v{S+1}")
        e(f"v_permlane32_swap_b32 v{S+2}, v{S+3}")
        e(f"v_add_f32 v{S}, v{S}, v{S+1}")
        e(f"v_add_f32 v{S+2}, v{S+2}, v{S+3}")
        pad(2)
        e(f"v_permlane16_swap_b32 v{S}, v{S+2}")
        e(f"v_add_f32 v{S}, v{S}, v{S+2}")
        lanes = [0, 32, 16, 48]
    elif R == 2:
        pad(3)
        e(f"v_permlane32_swap_b32 v{S}, v{S+1}")
        e(f"v_add_f32 v{S}, v{S}, v{S+1}")
        e(f"v_mov_b32 v{S+1}, v{S}")
        pad(2)
        e(f"v_permlane16_swap_b32 v{S}, v{S+1}")
        e(f"v_add_f32 v{S}, v{S}, v{S+1}")
        lanes = [0, 32]
    elif R == 1:
        pad(3)
        e(f"v_mov_b32 v{S+1}, v{S}")
        pad(2)
        e(f"v_permlane32_swap_b32 v{S}, v{S+1}")
        e(f"v_add_f32 v{S}, v{S}, v{S+1}")
        e(f"v_mov_b32 v{S+1}, v{S}")
        pad(2)
        e(f"v_permlane16_swap_b32 v{S}, v{S+1}")
        e(f"v_add_f32 v{S}, v{S}, v{S+1}")
        lanes = None
    for k in (8, 4, 2, 1):
        pad(2)
        e(f"v_add_f32_dpp v{S}, v{S}, v{S} row_ror:{k} row_mask:0xf bank_mask:0xf")
    e(f"v_mul_f32 v{S}, 0x3b000000, v{S}")
    e(f"v_cvt_pk_bf16_f32 v{S}, 0, v{S}")
    e(f"v_add_f32 v{S}, 0x358637bd, v{S}             ; + 1e-6")
    e(f"v_cvt_pk_bf16_f32 v{S}, 0, v{S}")
    e(f"v_sqrt_f32 v{S}, v{S}")
    pad(1)
    e(f"v_cvt_pk_bf16_f32 v{S}, 0, v{S}")
    e(f"v_rcp_f32 v{S}, v{S}")
    pad(1)
    return lanes, pad

def gen(R=2, NIT=8, W=4, NBUF=2, ldf="nt", stf="sc0 sc1", mapm="plain", mimic=False, diag=False, early=True, vmin=0):
    assert NIT % NBUF == 0
    NW = ROWS // (R * NIT)
    nwg = NW // W
    UB = R * 1024
    stride = NW * UB
    e = Emit()
    e.o.append(HDR + f"; @launch grid=({nwg},1,1) block=({64*W},1,1) lds=0")
    e('.amdgcn_target "amdgcn-amd-amdhsa--gfx950"')
    e(".text")
    e(f".globl {NAME}")
    e(".p2align 8")
    e(f".type {NAME},@function")
    e(f"{NAME}:")
    if diag:
        e("s_memrealtime s[40:41]")
        e("s_load_dwordx2 s[56:57], s[0:1], 32")
    e("s_load_dwordx4 s[4:7], s[0:1], 0            ; x, g")
    e("s_load_dwordx2 s[12:13], s[0:1], 16         ; out")
    e(f"s_cmp_ge_u32 s2, {nwg}")
    e("s_cbranch_scc1 L_end")
    if W > 1:
        e("v_lshrrev_b32 v1, 6, v0")
        e("v_lshlrev_b32 v0, 4, v0")
        e("v_readfirstlane_b32 s3, v1")
        e("v_and_b32 v0, 0x3f0, v0                     ; lane*16")
    else:
        e("s_mov_b32 s3, 0")
        e("v_lshlrev_b32 v0, 4, v0")
    if diag:
        e(f"s_lshl_b32 s58, s2, {lg(W)}")
        e("s_add_u32 s58, s58, s3")
    if mapm == "plain":
        e(f"s_lshl_b32 s20, s2, {lg(W)}")
        e("s_add_u32 s20, s20, s3")
        e(f"s_lshl_b32 s20, s20, {lg(UB)}")
    elif mapm.startswith("pw"):
        ph = mapm[-1]
        LOWN = 8192 // UB
        PPP = nwg // 2 // 16
        assert W * UB >= 8192
        stride = (2 << 20) // NIT
        e("s_lshr_b32 s20, s2, 3")
        e("s_lshl_b32 s20, s20, 2")
        e("s_and_b32 s22, s2, 3")
        e("s_or_b32 s22, s20, s22")
        e(f"s_lshr_b32 s20, s22, {lg(PPP)}")
        e("s_lshl_b32 s20, s20, 21")
        e(f"s_and_b32 s23, s22, {PPP-1}")
        e(f"s_lshl_b32 s23, s23, {lg(2*W*UB)}")
        e("s_or_b32 s20, s20, s23")
        e(f"s_and_b32 s23, s3, {LOWN-1}")
        e(f"s_lshl_b32 s23, s23, {lg(UB)}")
        e("s_or_b32 s20, s20, s23")
        e(f"s_lshr_b32 s23, s3, {lg(LOWN)}")
        e("s_lshl_b32 s23, s23, 14")
        e("s_or_b32 s20, s20, s23")
        if ph == "p":
            e("s_lshl_b32 s22, s22, 13")
        else:
            e("s_lshr_b32 s22, s20, 8")
        e("s_lshl_b32 s23, s2, 11")
        e("s_xor_b32 s22, s22, s23")
        if ph == "1":
            e("s_not_b32 s22, s22")
        e("s_and_b32 s22, s22, 0x2000")
        e("s_or_b32 s20, s20, s22")
    elif mapm.startswith("rg"):
        ph = mapm[-1]
        LOWN = 8192 // UB
        RS = XB // (nwg // 2)
        assert W * UB >= 8192
        stride = W * UB * 2
        e("s_lshr_b32 s20, s2, 3")
        e("s_lshl_b32 s20, s20, 2")
        e("s_and_b32 s22, s2, 3")
        e("s_or_b32 s20, s20, s22")
        e(f"s_lshl_b32 s20, s20, {lg(RS)}")
        e(f"s_and_b32 s22, s3, {LOWN-1}")
        e(f"s_lshl_b32 s22, s22, {lg(UB)}")
        e("s_or_b32 s20, s20, s22")
        e(f"s_lshr_b32 s22, s3, {lg(LOWN)}")
        e("s_lshl_b32 s22, s22, 14")
        e("s_or_b32 s20, s20, s22")
        if ph == "p":
            e("s_lshr_b32 s22, s20, " + str(lg(RS)) )
            e("s_lshl_b32 s22, s22, 13")
        else:
            e("s_lshr_b32 s22, s20, 8")
        e("s_lshl_b32 s23, s2, 11")
        e("s_xor_b32 s22, s22, s23")
        if ph == "1":
            e("s_not_b32 s22, s22")
        e("s_and_b32 s22, s22, 0x2000")
        e("s_or_b32 s20, s20, s22")
    else:
        ph = int(mapm[-1])
        LOWN = 8192 // UB
        e("s_lshr_b32 s20, s2, 3")
        e("s_lshl_b32 s20, s20, 2")
        e("s_and_b32 s22, s2, 3")
        e("s_or_b32 s20, s20, s22")
        e(f"s_lshl_b32 s20, s20, {lg(W)}")
        e("s_add_u32 s20, s20, s3")
        e(f"s_and_b32 s22, s20, {LOWN-1}")
        e(f"s_lshl_b32 s22, s22, {lg(UB)}")
        e(f"s_lshr_b32 s20, s20, {lg(LOWN)}")
        e("s_lshl_b32 s20, s20, 14")
        e("s_or_b32 s20, s20, s22")
        e("s_lshr_b32 s22, s20, 8")
        e("s_lshl_b32 s23, s2, 11")
        e("s_xor_b32 s22, s22, s23")
        if ph:
            e("s_not_b32 s22, s22")
        e("s_and_b32 s22, s22, 0x2000")
        e("s_or_b32 s20, s20, s22")
    flip = mapm.startswith("ph") and stride == (2 << 20)
    assert not mapm.startswith("ph") or stride >= (2 << 20)
    region = mapm.startswith(("rg", "pw"))
    e("v_add_u32 v2, s20, v0")
    e("v_add_u32 v3, s20, v0")
    e("s_mov_b32 s10, 0x2000000")
    e("s_mov_b32 s11, 0x20000")
    e("s_mov_b32 s14, 0x2000000")
    e("s_mov_b32 s15, 0x20000")
    e("s_mov_b32 s24, 0xffff0000")
    e(f"s_mov_b32 s25, {NIT//NBUF}")
    X = 4
    G = X + 4 * R * NBUF
    T = G + 8
    nT = 8 * R if early else 8
    O = T + nT
    nO = 4 * R if early else 0
    S = O + nO
    top = S + max(R, 2)
    GR = T
    e("s_waitcnt lgkmcnt(0)")
    if diag:
        e("s_memrealtime s[42:43]")
    e("s_mov_b32 s8, s4")
    e("s_mov_b32 s9, s5")
    def adv(sr):
        vr = {20: 2, 21: 3}[sr]
        e(f"v_add_u32 v{vr}, {stride}, v{vr}")
        if flip:
            e(f"v_xor_b32 v{vr}, 0x2000, v{vr}")
    def loads(b):
        for r in range(R):
            x = X + 4 * (b * R + r)
            e(f"buffer_load_dwordx4 v[{x}:{x+3}], v2, s[8:11], 0 offen offset:{r*1024} {ldf}".rstrip())
        adv(20)
    loads(0)
    e(f"global_load_dwordx4 v[{GR}:{GR+3}], v0, s[6:7]")
    for b in range(1, NBUF):
        loads(b)
    e(f"s_waitcnt vmcnt({(NBUF-1)*R})")
    if diag:
        e("s_memrealtime s[44:45]")
    for i in range(4):
        e(f"v_lshlrev_b32 v{G+2*i}, 16, v{GR+i}")
        e(f"v_and_b32 v{G+2*i+1}, s24, v{GR+i}")
    e("s_branch L_body")
    e(".p2align 6")
    e("L_loop:")
    for b in range(NBUF):
        if early:
            n_after = R + (NBUF - 1) * 2 * R
        else:
            n_after = (NBUF - 1) * 2 * R
        e(f"s_waitcnt vmcnt({n_after})") if b == 0 else None
        if b == 0:
            e("L_body:")
        else:
            first = (NBUF - 1 - b) * R + b * 2 * R
            if first < n_after:
                e(f"s_cmp_lg_u32 s25, {NIT//NBUF}")
                e(f"s_cbranch_scc1 L_w{b}")
                e(f"s_waitcnt vmcnt({first})")
                e(f"L_w{b}:")
            e(f"s_waitcnt vmcnt({n_after})")
        xs = [X + 4 * (b * R + r) for r in range(R)]
        for i in range(4):
            for r in range(R):
                src = "0" if i == 0 else f"v{S+r}"
                e(f"v_dot2_f32_bf16 v{S+r}, v{xs[r]+i}, v{xs[r]+i}, {src}")
        if early:
            fill = []
            for r in range(R):
                for i in range(4):
                    fill.append(f"v_lshlrev_b32 v{T+8*r+2*i}, 16, v{xs[r]+i}")
                    fill.append(f"v_and_b32 v{T+8*r+2*i+1}, s24, v{xs[r]+i}")
            unp = fill
            for s in unp:
                e(s)
            if region and b == 0:
                e("s_cmp_eq_u32 s25, 1")
                e("s_cselect_b32 s26, 0x4000000, 0")
                e("v_add_u32 v2, s26, v2")
            loads(b)
            fill = []
            if not mimic:
                for r in range(R):
                    for i in range(4):
                        t = T + 8 * r + 2 * i
                        fill.append(f"v_pk_mul_f32 v[{t}:{t+1}], v[{t}:{t+1}], v[{G+2*i}:{G+2*i+1}]")
            lanes, pad = reduce_rows(e, R, S, fill)
            if lanes:
                for r in range(R):
                    e(f"v_readlane_b32 s{16+r}, v{S}, {lanes[r]}")
                pad(2)
            for s in fill:
                e(s)
            for r in range(R):
                if lanes:
                    sp = 16 + (r & 2)
                    sc = f"s[{sp}:{sp+1}]"
                    sel = "op_sel_hi:[1,0]" if r % 2 == 0 else "op_sel:[0,1] op_sel_hi:[1,1]"
                else:
                    sc, sel = f"v[{S}:{S+1}]", "op_sel_hi:[1,0]"
                for i in range(4):
                    t = T + 8 * r + 2 * i
                    e(f"v_pk_mul_f32 v[{t}:{t+1}], v[{t}:{t+1}], {sc} {sel}")
                if mimic:
                    for i in range(8):
                        e(f"v_cvt_pk_bf16_f32 v{T+8*r+i}, 0, v{T+8*r+i}")
                    for i in range(4):
                        t = T + 8 * r + 2 * i
                        e(f"v_pk_mul_f32 v[{t}:{t+1}], v[{t}:{t+1}], v[{G+2*i}:{G+2*i+1}]")
                for i in range(4):
                    t = T + 8 * r + 2 * i
                    e(f"v_cvt_pk_bf16_f32 v{O+4*r+i}, v{t}, v{t+1}")
                e(f"buffer_store_dwordx4 v[{O+4*r}:{O+4*r+3}], v3, s[12:15], 0 offen offset:{r*1024} {stf}".rstrip())
            adv(21)
        else:
            raise NotImplementedError
    e("s_sub_u32 s25, s25, 1")
    e("s_cmp_lg_u32 s25, 0")
    e("s_cbranch_scc1 L_loop")
    if diag:
        e("s_memrealtime s[46:47]")
        e("s_waitcnt vmcnt(0)")
        e("s_memrealtime s[48:49]")
        e("s_getreg_b32 s50, hwreg(HW_REG_HW_ID)")
        e("s_getreg_b32 s51, hwreg(HW_REG_XCC_ID)")
        e("s_lshl_b32 s58, s58, 5")
        e("v_mov_b32 v1, s58")
        e("s_waitcnt lgkmcnt(0)")
        for i, sr in enumerate((40, 42, 44, 44, 46, 48, 50, 51)):
            e(f"v_mov_b32 v{4+i}, s{sr}")
        e("s_mov_b64 exec, 1")
        e("global_store_dwordx4 v1, v[4:7], s[56:57]")
        e("global_store_dwordx4 v1, v[8:11], s[56:57] offset:16")
    e("L_end:")
    e("s_endpgm")
    nv = max(top, vmin, 12)
    e('.section .rodata,"a"')
    e(".p2align 6")
    e(f".amdhsa_kernel {NAME}")
    e(f"  .amdhsa_next_free_vgpr {nv}")
    e(f"  .amdhsa_next_free_sgpr {64 if diag else 32}")
    e(f"  .amdhsa_accum_offset {(nv+3)//4*4}")
    e("  .amdhsa_group_segment_fixed_size 0")
    e("  .amdhsa_kernarg_size 40")
    e("  .amdhsa_user_sgpr_count 2")
    e("  .amdhsa_user_sgpr_kernarg_segment_ptr 1")
    e("  .amdhsa_system_sgpr_workgroup_id_x 1")
    e("  .amdhsa_float_denorm_mode_32 3")
    e(".end_amdhsa_kernel")
    return e.text()

def WAITB(b, R, NBUF, early):
    first = (NBUF - 1 - b) * R + b * 2 * R
    steady = R + (NBUF - 1) * 2 * R
    return min(first, steady)

if __name__ == "__main__":
    ap = argparse.ArgumentParser()
    ap.add_argument("out")
    ap.add_argument("-R", type=int, default=2)
    ap.add_argument("-N", type=int, default=8)
    ap.add_argument("-W", type=int, default=4)
    ap.add_argument("-B", type=int, default=2)
    ap.add_argument("--ldf", default="nt")
    ap.add_argument("--stf", default="sc0 sc1")
    ap.add_argument("--map", default="plain")
    ap.add_argument("--mimic", action="store_true")
    ap.add_argument("--diag", action="store_true")
    ap.add_argument("--vmin", type=int, default=0)
    a = ap.parse_args()
    open(a.out, "w").write(gen(a.R, a.N, a.W, a.B, a.ldf, a.stf, a.map, a.mimic, a.diag, True, a.vmin))
```

```python
import gen2
s = gen2.gen(2, 8, 4, 2, "nt", "sc0 sc1", "plain")
extra = """
    s_cmp_lg_u32 s2, 0
    s_cbranch_scc1 L_end
    s_cmp_lg_u32 s3, 0
    s_cbranch_scc1 L_end
    s_load_dwordx2 s[30:31], s[0:1], 24
    s_memrealtime s[32:33]
    s_waitcnt lgkmcnt(0)
    s_add_u32 s34, s32, 4000
L_spin:
    s_memrealtime s[32:33]
    s_waitcnt lgkmcnt(0)
    s_cmp_lt_u32 s32, s34
    s_cbranch_scc1 L_spin
    s_mov_b64 exec, 1
    s_mov_b32 s40, 0
L_buf:
    s_cmp_eq_u32 s40, 0
    s_cselect_b32 s36, s8, s12
    s_cselect_b32 s37, s9, s13
    s_mov_b32 s41, 0            ; page
    s_mov_b32 s42, 0
    s_mov_b32 s43, 0
L_page:
    s_mov_b32 s44, 0            ; class
L_cls:
    s_lshl_b32 s45, s41, 21
    s_lshl_b32 s46, s44, 13
    s_add_u32 s45, s45, s46
    s_add_u32 s45, s45, 0x4000
    v_mov_b32 v4, s45
    global_load_dword v5, v4, s[36:37] offset:3968
    s_waitcnt vmcnt(0)
    s_mov_b32 s47, 0xffff
    s_mov_b32 s48, 0
L_smp:
    s_memtime s[50:51]
    s_waitcnt lgkmcnt(0)
    global_load_dword v5, v4, s[36:37]
    s_waitcnt vmcnt(0)
    s_memtime s[52:53]
    s_waitcnt lgkmcnt(0)
    s_sub_u32 s52, s52, s50
    s_min_u32 s47, s47, s52
    v_add_u32 v4, 256, v4
    s_add_u32 s48, s48, 1
    s_cmp_lt_u32 s48, 8
    s_cbranch_scc1 L_smp
    s_cmp_eq_u32 s44, 0
    s_cselect_b32 s49, s47, s49
    s_add_u32 s44, s44, 1
    s_cmp_lt_u32 s44, 2
    s_cbranch_scc1 L_cls
    s_cmp_lt_u32 s47, s49
    s_cselect_b32 s54, 1, 0
    s_lshl_b32 s54, s54, s41
    s_or_b32 s42, s42, s54
    s_sub_i32 s54, s47, s49
    s_abs_i32 s54, s54
    s_cmp_lt_u32 s54, 100
    s_cselect_b32 s54, 1, 0
    s_lshl_b32 s54, s54, s41
    s_or_b32 s43, s43, s54
    s_add_u32 s41, s41, 1
    s_cmp_lt_u32 s41, 16
    s_cbranch_scc1 L_page
    s_lshl_b32 s54, s40, 4
    v_mov_b32 v4, s54
    v_mov_b32 v6, s42
    v_mov_b32 v7, s43
    v_mov_b32 v8, s36
    v_mov_b32 v9, s37
    global_store_dwordx4 v4, v[6:9], s[30:31]
    s_add_u32 s40, s40, 1
    s_cmp_lt_u32 s40, 2
    s_cbranch_scc1 L_buf
    s_getreg_b32 s54, hwreg(HW_REG_XCC_ID)
    v_mov_b32 v4, 32
    v_mov_b32 v6, s54
    global_store_dword v4, v6, s[30:31]
"""
s = s.replace("L_end:\n", extra + "L_end:\n").replace("next_free_sgpr 32", "next_free_sgpr 64")
open("v/d_phase.s", "w").write(s)
```
